```python
import torch

def _softmax(x, axis=-1):
    return torch.softmax(x, dim=axis)
def _gelu(x):
    return torch.nn.functional.gelu(x, approximate="tanh")
def _silu(x):
    return torch.nn.functional.silu(x)
def _sigmoid(x):
    return torch.sigmoid(x)
def _layernorm(x, axis=-1, eps=1e-5):
    m = x.mean(dim=axis, keepdim=True)
    v = x.var(dim=axis, keepdim=True, unbiased=False)
    return (x - m) / torch.sqrt(v + eps)
def _scatter_add(tgt, idx, src, axis=0):
    return tgt.clone().index_add_(axis, idx, src)
def _segment_sum(src, seg, n):
    out = torch.zeros((n,) + src.shape[1:], dtype=src.dtype)
    return out.index_add_(0, seg, src)
def _pad(x, pw):
    flat = tuple(v for pair in reversed(pw) for v in pair)
    return torch.nn.functional.pad(x, flat)

kernel_name = 'sequential_preLN__ssm_conv_h3__mixer_s_mlp__prompt'

def setup_inputs():

    _w = (lambda a: (lambda t: t.to(torch.bfloat16) if t.is_floating_point() else t)(torch.as_tensor(a)))
    def _A_setup():
        B, S, D = 1, 2048, 576
        ks = 4
        return {
            "q": _w((lambda *s: torch.randn(*s, dtype=torch.bfloat16) * 0.05)(B, S, D)),
            "k": _w((lambda *s: torch.randn(*s, dtype=torch.bfloat16) * 0.4)(B, S, D)),
            "v": _w((lambda *s: torch.randn(*s, dtype=torch.bfloat16) * 0.4)(B, S, D)),
            "shift_k": _w((lambda *s: torch.randn(*s, dtype=torch.bfloat16) * 0.4)(D, ks) * 0.5),
            "ssm_k": _w((lambda *s: torch.randn(*s, dtype=torch.bfloat16) * 0.4)(D, S) * (1.0 / S ** 0.5)),
            "ssm_D": _w((lambda *s: torch.randn(*s, dtype=torch.bfloat16) * 0.4)(D)),
        }
    _A_in = _A_setup()

    def _B_setup():
        B, S, D, F = 1, 2048, 576, 4608
        return {
            "x":  _w((lambda *s: torch.randn(*s, dtype=torch.bfloat16) * 0.05)(B, S, D)),
            "w1": _w((lambda *s: torch.randn(*s, dtype=torch.bfloat16) * 3.2)(D, D) * (D ** -0.5)),
            "w2": _w((lambda *s: torch.randn(*s, dtype=torch.bfloat16) * 3.2)(D, D) * (D ** -0.5)),
            "w3": _w((lambda *s: torch.randn(*s, dtype=torch.bfloat16) * 3.2)(D, F) * (D ** -0.5)),
            "w4": _w((lambda *s: torch.randn(*s, dtype=torch.bfloat16) * 1.6)(F, D) * (F ** -0.5)),
        }
    _B_in = _B_setup()

    return {
        "A_q": _A_in["q"],
        "A_k": _A_in["k"],
        "A_v": _A_in["v"],
        "A_shift_k": _A_in["shift_k"],
        "A_ssm_k": _A_in["ssm_k"],
        "A_ssm_D": _A_in["ssm_D"],
        "B_x": _B_in["x"],
        "B_w1": _B_in["w1"],
        "B_w2": _B_in["w2"],
        "B_w3": _B_in["w3"],
        "B_w4": _B_in["w4"],
    }

def reference(A_q, A_k, A_v, A_shift_k, A_ssm_k, A_ssm_D, B_x, B_w1, B_w2, B_w3, B_w4):
    def _A_ref(q, k, v, shift_k, ssm_k, ssm_D):
        B, S, D = q.shape
        ks = shift_k.shape[-1]
        k_pad = _pad(k, ((0, 0), (ks - 1, 0), (0, 0)))
        k_shift = torch.zeros_like(k)
        for t in range(ks):
            k_shift = k_shift + k_pad[:, t:t + S, :] * shift_k[:, ks - 1 - t][None, None, :]
        kv = k_shift * v
        L = 2 * S
        kv_pad = _pad(kv, ((0, 0), (0, S), (0, 0)))
        kf_pad = _pad(ssm_k, ((0, 0), (0, S)))
        kv_f = (lambda x, axes=(-2,-1): torch.fft.rfft2(x.float(), dim=axes))(kv_pad[:, None, :, :], axes=(1, 2))
        kf_f = (lambda x, axes=(-2,-1): torch.fft.rfft2(x.float(), dim=axes))(kf_pad[:, None, :], axes=(1, 2))
        kf_f = (lambda x, *d: x.permute(*d))(kf_f, 1, 2, 0)
        y_f = kv_f * kf_f[None, :, :, :]
        y = (lambda x, s, axes=(-2,-1): torch.fft.irfft2(x, s=s, dim=axes).to(torch.bfloat16))(y_f, (1, L), axes=(1, 2))[:, 0, :S, :]
        y = y + kv * ssm_D[None, None, :]
        return q * y

    def _B_ref(x, w1, w2, w3, w4):
        B, S, D = x.shape
        h = _gelu(_layernorm(x, axis=-1) @ w1)
        c = D // 4
        g0 = _pad(h[:, :, 0*c:1*c], ((0, 0), (1, 0), (0, 0)))[:, :S, :]
        g1 = _pad(h[:, :, 1*c:2*c], ((0, 0), (0, 1), (0, 0)))[:, 1:, :]
        g2 = _pad(h[:, :, 2*c:3*c], ((0, 0), (2, 0), (0, 0)))[:, :S, :]
        g3 = _pad(h[:, :, 3*c:   ], ((0, 0), (0, 2), (0, 0)))[:, 2:, :]
        hs = torch.concatenate([g0, g1, g2, g3], axis=-1) @ w2
        x1 = x + hs
        h2 = _gelu(_layernorm(x1, axis=-1) @ w3) @ w4
        return x1 + h2

    x = A_q
    h = x + _A_ref(_layernorm(x, axis=-1), A_k, A_v, A_shift_k, A_ssm_k, A_ssm_D)
    h2 = h + _B_ref(_layernorm(h, axis=-1), B_w1, B_w2, B_w3, B_w4)
    return h2
```

```python
import re

_REG_RE = re.compile(r'\b([vas])(\d+)\b|\b([vas])\[(\d+):(\d+)\]')
TRANS = ('v_exp_f32', 'v_log_f32', 'v_rcp_f32', 'v_rsq_f32', 'v_sqrt_f32', 'v_sin_f32', 'v_cos_f32',
         'v_rcp_iflag_f32')


def regs_of(tok):
    out = set()
    t = tok.strip()
    if t.startswith('vcc'):
        out.add(('s', 'vcc'))
        return out
    if t == 'exec' or t.startswith('exec_'):
        out.add(('s', 'exec'))
        return out
    if t == 'm0':
        out.add(('s', 'm0'))
        return out
    for m in _REG_RE.finditer(t):
        if m.group(1):
            out.add((m.group(1), int(m.group(2))))
        else:
            for i in range(int(m.group(4)), int(m.group(5)) + 1):
                out.add((m.group(3), i))
    return out


def split_ops(s):
    ops, depth, cur = [], 0, ''
    for ch in s:
        if ch == '[':
            depth += 1
        elif ch == ']':
            depth -= 1
        if ch == ',' and depth == 0:
            ops.append(cur.strip())
            cur = ''
        else:
            cur += ch
    if cur.strip():
        ops.append(cur.strip())
    return ops


class Ins:
    __slots__ = ('text', 'mn', 'ops', 'cls', 'rd', 'wr', 'passes', 'mA', 'mB', 'mC', 'mD', 'dpp', 'states',
                 'is_label', 'target', 'lds_dma', 'wide_store', 'stdata')

    def __init__(self, text):
        self.text = text
        body = text.split(';')[0].strip()
        self.is_label = body.endswith(':')
        self.target = None
        self.rd, self.wr = set(), set()
        self.passes = 0
        self.mA = self.mB = self.mC = self.mD = set()
        self.dpp = False
        self.states = 1
        self.lds_dma = False
        self.wide_store = False
        self.stdata = set()
        if self.is_label or not body or body.startswith('.'):
            self.mn, self.ops, self.cls, self.states = '', [], 'none', 0
            return
        parts = body.split(None, 1)
        mn = parts[0]
        self.mn = mn
        rest = parts[1] if len(parts) > 1 else ''
        ops = split_ops(rest)
        mods = ''
        if ops:
            lp = ops[-1]
            m = re.match(r'^(\S+)(\s+.*)?$', lp)
            if m and m.group(2):
                ops[-1] = m.group(1)
                mods = m.group(2)
        self.ops = ops
        R = [regs_of(o) for o in ops]
        if mn.startswith('v_mfma'):
            self.cls = 'mfma'
            self.passes = 8 if '32x32' in mn else 4
            self.mD, self.mA, self.mB, self.mC = R[0], R[1], R[2], R[3]
            self.wr = set(R[0])
            self.rd = R[1] | R[2] | R[3]
        elif mn.startswith('v_'):
            self.cls = 'valu'
            self.dpp = ('_dpp' in mn) or ('quad_perm' in mods) or ('row_' in mods) or ('wave_' in mods)
            if mn.startswith('v_cmp'):
                self.wr = set(R[0])
                for r in R[1:]:
                    self.rd |= r
            elif 'permlane' in mn and 'swap' in mn:
                self.wr = R[0] | R[1]
                self.rd = R[0] | R[1]
            elif '_co_' in mn or mn.startswith('v_mad_u64') or mn.startswith('v_div_scale'):
                self.wr = R[0] | R[1]
                for r in R[2:]:
                    self.rd |= r
            elif mn == 'v_nop':
                pass
            else:
                self.wr = set(R[0])
                for r in R[1:]:
                    self.rd |= r
                if mn.startswith('v_fmac') or mn.startswith('v_dot2c') or mn.startswith('v_writelane') \
                        or self.dpp or mn.startswith('v_pk_fmac'):
                    self.rd |= R[0]
                if mn.startswith('v_cndmask') and len(ops) == 3:
                    self.rd.add(('s', 'vcc'))
        elif mn.startswith('ds_'):
            self.cls = 'ds'
            if mn.startswith('ds_read') or mn.startswith('ds_bpermute') or mn.startswith('ds_permute') \
                    or mn.startswith('ds_swizzle'):
                self.wr = set(R[0])
                for r in R[1:]:
                    self.rd |= r
            else:
                for r in R:
                    self.rd |= r
        elif mn.startswith('buffer_') or mn.startswith('global_'):
            self.cls = 'vmem'
            lds = (' lds' in (' ' + mods)) or ('_lds_' in mn)
            self.lds_dma = lds
            if 'load' in mn and not lds:
                self.wr = set(R[0])
                for r in R[1:]:
                    self.rd |= r
            elif 'atomic' in mn and 'sc0' in mods:
                self.wr = set(R[0])
                for r in R:
                    self.rd |= r
            else:
                for r in R:
                    self.rd |= r
                if 'store' in mn and ('x3' in mn or 'x4' in mn):
                    self.wide_store = True
                    self.stdata = R[0] if mn.startswith('buffer_') else R[1]
            if lds:
                self.rd.add(('s', 'm0'))
        elif mn.startswith('s_'):
            self.cls = 'salu'
            if mn == 's_nop':
                self.states = int(ops[0], 0) + 1
            elif mn.startswith('s_cbranch') or mn == 's_branch':
                self.target = ops[0]
            elif mn == 's_getpc_b64':
                self.wr = set(R[0])
            elif mn.startswith('s_cmp') or mn in ('s_waitcnt', 's_barrier', 's_endpgm', 's_setprio', 's_sleep'):
                for r in R:
                    self.rd |= r
            else:
                if R:
                    self.wr = set(R[0])
                    for r in R[1:]:
                        self.rd |= r
                if 'saveexec' in mn:
                    self.wr.add(('s', 'exec'))
        else:
            raise ValueError('unknown instruction: ' + text)


def base_mn(mn):
    return re.sub(r'_(e32|e64|dpp|sdwa)$', '', mn)


def need_states(p, c):
    n = 0
    if p.cls == 'valu':
        vw = {r for r in p.wr if r[0] in 'va'}
        sw = {r for r in p.wr if r[0] == 's'}
        if vw:
            if c.cls == 'mfma' and (vw & c.rd):
                n = max(n, 2)
            if c.cls == 'valu':
                if c.dpp and (vw & c.rd):
                    n = max(n, 2)
                if 'permlane' in c.mn and (vw & c.rd):
                    n = max(n, 2)
                if (c.mn.startswith('v_readlane') or c.mn.startswith('v_readfirstlane')) and (vw & c.rd):
                    n = max(n, 1)
                if base_mn(p.mn) in TRANS and base_mn(c.mn) not in TRANS and (vw & c.rd):
                    n = max(n, 1)
            if p.mn.startswith('v_dot'):
                if vw & (c.rd | c.wr):
                    if c.mn == p.mn:
                        ab = regs_of(c.ops[1]) | regs_of(c.ops[2])
                        if vw & ab:
                            n = max(n, 3)
                    else:
                        n = max(n, 3)
        if sw:
            if c.cls == 'vmem' and (sw & c.rd):
                n = max(n, 5)
            if c.cls == 'valu' and (sw & c.rd):
                if c.mn.startswith('v_readlane') or c.mn.startswith('v_writelane'):
                    n = max(n, 4)
                else:
                    n = max(n, 2)
            if c.cls == 'salu' and (sw & c.rd):
                n = max(n, 1)
            if c.cls == 'mfma' and ('s', 'exec') in sw:
                n = max(n, 4)
    elif p.cls == 'mfma':
        big = 12 if p.passes == 8 else 8
        ovl = 10 if p.passes == 8 else 6
        if c.cls == 'mfma':
            if p.mD & (c.mA | c.mB):
                n = max(n, big)
            if p.mD & c.mC:
                if not (p.mD == c.mC and p.passes == c.passes):
                    n = max(n, ovl)
            elif p.mD & c.mD:
                n = max(n, big)
        elif c.cls in ('valu', 'vmem', 'ds'):
            if p.mD & (c.rd | c.wr):
                n = max(n, big)
            if c.cls == 'valu' and (p.mC & c.wr):
                n = max(n, 7 if p.passes == 8 else 3)
    elif p.cls == 'salu':
        if ('s', 'm0') in p.wr and c.lds_dma:
            n = max(n, 1)
    elif p.cls == 'vmem':
        if p.wide_store and (p.stdata & c.wr):
            n = max(n, 2 if c.cls in ('valu', 'mfma') else 1)
    return n


WINDOW = 14


class Kernel:
    def __init__(self, name):
        self.name = name
        self.ins = []
        self.nlab = 0

    def __call__(self, text):
        for line in text.strip('\n').split('\n'):
            line = line.strip()
            if not line:
                continue
            if line == 's_barrier' and getattr(self, 'nobar', False):
                continue
            self.ins.append(Ins(line))

    def label(self, name):
        self.ins.append(Ins(name + ':'))

    def newlabel(self, base):
        self.nlab += 1
        return 'L_%s_%s_%d' % (self.name[:6], base, self.nlab)

    def comment(self, t):
        self.ins.append(Ins('; ' + t))

    def _required(self, hist, c):
        need = 0
        dist = 0
        for p in reversed(hist):
            if dist >= WINDOW:
                break
            if p.states:
                n = need_states(p, c)
                if n > dist:
                    need = max(need, n - dist)
            dist += p.states
        return need

    def finalize(self):
        out = []
        labels = {}
        for c in self.ins:
            if c.is_label:
                labels[c.text.split(':')[0].strip()] = len(out)
                out.append(c)
                continue
            if c.states:
                need = self._required(out, c)
                while need > 0:
                    k = min(need, 16)
                    out.append(Ins('s_nop %d' % (k - 1)))
                    need -= k
                if c.target is not None and c.target in labels:
                    head = out[labels[c.target]:]
                    hist = list(out) + [c]
                    extra = 0
                    seen = 0
                    sim = list(hist)
                    for h in head:
                        if not h.states:
                            continue
                        nd = self._required(sim, h)
                        extra = max(extra, nd)
                        sim.append(h)
                        seen += h.states
                        if seen >= WINDOW:
                            break
                    while extra > 0:
                        k = min(extra, 16)
                        out.append(Ins('s_nop %d' % (k - 1)))
                        extra -= k
            out.append(c)
        idx = {}
        for i, c in enumerate(out):
            if c.is_label:
                idx[c.text.split(':')[0].strip()] = i
        for i, c in enumerate(out):
            if c.target is not None and idx.get(c.target, -1) > i:
                sim = out[:i + 1]
                seen = 0
                for h in out[idx[c.target]:]:
                    if not h.states:
                        continue
                    nd = self._required(sim, h)
                    if nd:
                        raise RuntimeError('hazard across forward branch %s -> %s' % (c.text, h.text))
                    sim = sim + [h]
                    seen += h.states
                    if seen >= WINDOW:
                        break
        self.out = out
        return out

    def maxregs(self):
        mv = ma = ms = -1
        for c in self.out:
            for k, i in (c.rd | c.wr):
                if isinstance(i, int):
                    if k == 'v':
                        mv = max(mv, i)
                    elif k == 'a':
                        ma = max(ma, i)
                    else:
                        ms = max(ms, i)
        return mv, ma, ms

    def text(self):
        out = self.finalize()
        lines = ['.globl %s' % self.name, '.p2align 8', '.type %s,@function' % self.name, '%s:' % self.name]
        for c in out:
            lines.append(c.text if c.is_label else '    ' + c.text)
        return '\n'.join(lines) + '\n'

    def descriptor(self, force_vgpr=None):
        mv, ma, ms = self.maxregs()
        acc_off = max(4, (mv + 1 + 3) // 4 * 4)
        nfv = acc_off + ma + 1 if ma >= 0 else mv + 1
        if force_vgpr:
            assert force_vgpr >= nfv
            nfv = force_vgpr
        return '\n'.join([
            '.p2align 6',
            '.amdhsa_kernel %s' % self.name,
            '  .amdhsa_next_free_vgpr %d' % nfv,
            '  .amdhsa_next_free_sgpr %d' % max(ms + 1, 16),
            '  .amdhsa_accum_offset %d' % acc_off,
            '  .amdhsa_group_segment_fixed_size 0',
            '  .amdhsa_kernarg_size 112',
            '  .amdhsa_user_sgpr_count 2',
            '  .amdhsa_user_sgpr_kernarg_segment_ptr 1',
            '  .amdhsa_system_sgpr_workgroup_id_x 1',
            '  .amdhsa_float_denorm_mode_32 3',
            '  .amdhsa_float_denorm_mode_16_64 3',
            '.end_amdhsa_kernel', ''])


def vr(base, n=1):
    return 'v%d' % base if n == 1 else 'v[%d:%d]' % (base, base + n - 1)


def ar(base, n=1):
    return 'a%d' % base if n == 1 else 'a[%d:%d]' % (base, base + n - 1)


def sr(base, n=1):
    return 's%d' % base if n == 1 else 's[%d:%d]' % (base, base + n - 1)


def f32bits(x):
    import struct
    return '0x%08x' % struct.unpack('<I', struct.pack('<f', x))[0]
```

```python
from asmlib import *

S, D, F = 2048, 576, 4608
ACT = S * D * 2

WS_Y2P = 0
WS_QST = WS_Y2P + ACT
WS_H = WS_QST + 16384
WS_HST = WS_H + ACT
WS_H1 = WS_HST + 16384
WS_X1F = WS_H1 + ACT
WS_X1ST = WS_X1F + ACT
WS_W1S = WS_X1ST + 65536
WS_W2S = WS_W1S + 663552
WS_S1 = WS_W2S + 663552
WS_W3S = WS_S1 + 4096
WS_W3A = WS_W3S + 5308416
WS_W4S = WS_W3A + 73728
WS_PART = WS_W4S + 5308416
WS_END = WS_PART + 8 * ACT

P_Q, P_K, P_V, P_SH, P_SK, P_SD, P_BX, P_W1, P_W2, P_W3, P_W4, P_OUT, P_DBG, P_WS = [16 + 2 * i for i in range(14)]

EPS = 1e-5
LOG2E = 1.4426950408889634
GC1 = -2.0 * 0.7978845608028654 * LOG2E
GC2 = GC1 * 0.044715


def load_kernargs(k):
    k('s_load_dwordx16 s[16:31], s[0:1], 0')
    k('s_load_dwordx8 s[32:39], s[0:1], 64')
    k('s_load_dwordx4 s[40:43], s[0:1], 96')


def srd(k, d, ptr, off, size):
    if off == 0:
        k('s_mov_b32 s%d, s%d' % (d, ptr))
        k('s_mov_b32 s%d, s%d' % (d + 1, ptr + 1))
    else:
        k('s_add_u32 s%d, s%d, %s' % (d, ptr, off))
        k('s_addc_u32 s%d, s%d, 0' % (d + 1, ptr + 1))
    k('s_mov_b32 s%d, %d' % (d + 2, size))
    k('s_mov_b32 s%d, 0x20000' % (d + 3))


def rnd1(k, x, t):
    k('v_cvt_pk_bf16_f32 v%d, v%d, v%d' % (t, x, x))
    k('v_lshlrev_b32 v%d, 16, v%d' % (x, t))


def rnd2(k, a, b, t):
    k('v_cvt_pk_bf16_f32 v%d, v%d, v%d' % (t, a, b))
    k('v_lshlrev_b32 v%d, 16, v%d' % (a, t))
    k('v_and_b32 v%d, 0xffff0000, v%d' % (b, t))


def unpack(k, lo, hi, src):
    k('v_lshlrev_b32 v%d, 16, v%d' % (lo, src))
    k('v_and_b32 v%d, 0xffff0000, v%d' % (hi, src))


def ln_scalars(k, mean, var, mb, rs, t):
    k('v_mov_b32 v%d, v%d' % (mb, mean))
    rnd1(k, mb, t)
    k('v_max_f32 v%d, 0, v%d' % (rs, var))
    rnd1(k, rs, t)
    k('v_add_f32 v%d, %s, v%d' % (rs, f32bits(EPS), rs))
    rnd1(k, rs, t)
    k('v_sqrt_f32 v%d, v%d' % (rs, rs))
    rnd1(k, rs, t)
    k('v_rcp_f32 v%d, v%d' % (rs, rs))


def mean_var(k, s1, s2, mean, var):
    k('v_mul_f32 v%d, %s, v%d' % (mean, f32bits(1.0 / D), s1))
    k('v_mul_f32 v%d, %s, v%d' % (var, f32bits(1.0 / D), s2))
    k('v_fma_f32 v%d, -v%d, v%d, v%d' % (var, mean, mean, var))


def xor16_32_sum(k, x, t, do16=True, do32=True):
    if do16:
        k('v_mov_b32 v%d, v%d' % (t, x))
        k('v_permlane16_swap_b32 v%d, v%d' % (x, t))
        k('v_add_f32 v%d, v%d, v%d' % (x, x, t))
    if do32:
        k('v_mov_b32 v%d, v%d' % (t, x))
        k('v_permlane32_swap_b32 v%d, v%d' % (x, t))
        k('v_add_f32 v%d, v%d, v%d' % (x, x, t))
```

```python
import sys, importlib
from common import *
HEADER = open('sequential_preLN__ssm_conv_h3__mixer_s_mlp__prompt.s.ref').read().split('; Override launch')[0]

def build(kernels, path):
    out = [HEADER.rstrip('\n')]
    for k, (g, b, lds) in kernels:
        out.append('; @launch kernel=%s grid=(%d,1,1) block=(%d,1,1) lds=%d' % (k.name, g, b, lds))
    out.append('.amdgcn_target "amdgcn-amd-amdhsa--gfx950"')
    out.append('.text')
    seen = []
    for k, _ in kernels:
        if k.name in seen: continue
        seen.append(k.name)
        out.append(k.text())
    out.append('.section .rodata,"a"')
    seen = []
    for k, _ in kernels:
        if k.name in seen: continue
        seen.append(k.name)
        out.append(k.descriptor(getattr(k, 'force_vgpr', None)))
        print(k.name, 'regs v/a/s', k.maxregs(), 'instrs', sum(1 for c in k.out if c.states))
    open(path, 'w').write('\n'.join(out))

if __name__ == '__main__':
    which = sys.argv[1] if len(sys.argv) > 1 else 'abcde'
    path = sys.argv[2] if len(sys.argv) > 2 else 'sequential_preLN__ssm_conv_h3__mixer_s_mlp__prompt.s'
    ks = []
    for c in which:
        m = importlib.import_module('k' + c)
        ks.append(getattr(m, 'build_k' + c)())
    build(ks, path)
```

```python
from asmlib import *

S, D, F = 2048, 576, 4608
ACT = S * D * 2

WS_Y2P = 0
WS_QST = WS_Y2P + ACT
WS_H = WS_QST + 16384
WS_HST = WS_H + ACT
WS_H1 = WS_HST + 16384
WS_X1F = WS_H1 + ACT
WS_X1ST = WS_X1F + ACT
WS_W1S = WS_X1ST + 65536
WS_W2S = WS_W1S + 663552
WS_S1 = WS_W2S + 663552
WS_S3 = WS_S1 + 4096
WS_W3S = WS_S3 + 20480
WS_W4S = WS_W3S + 5308416
WS_PART = WS_W4S + 5308416
WS_FLAG = WS_PART + 8 * ACT
WS_END = WS_FLAG + 32768

P_Q, P_K, P_V, P_SH, P_SK, P_SD, P_BX, P_W1, P_W2, P_W3, P_W4, P_OUT, P_DBG, P_WS = [16 + 2 * i for i in range(14)]

EPS = 1e-5
LOG2E = 1.4426950408889634
GC1 = -2.0 * 0.7978845608028654 * LOG2E
GC2 = GC1 * 0.044715


def load_kernargs(k):
    k('s_load_dwordx16 s[16:31], s[0:1], 0')
    k('s_load_dwordx8 s[32:39], s[0:1], 64')
    k('s_load_dwordx4 s[40:43], s[0:1], 96')


def srd(k, d, ptr, off, size):
    if off == 0:
        k('s_mov_b32 s%d, s%d' % (d, ptr))
        k('s_mov_b32 s%d, s%d' % (d + 1, ptr + 1))
    else:
        k('s_add_u32 s%d, s%d, %s' % (d, ptr, off))
        k('s_addc_u32 s%d, s%d, 0' % (d + 1, ptr + 1))
    k('s_mov_b32 s%d, %d' % (d + 2, size))
    k('s_mov_b32 s%d, 0x20000' % (d + 3))


def rnd1(k, x, t):
    k('v_cvt_pk_bf16_f32 v%d, v%d, v%d' % (t, x, x))
    k('v_lshlrev_b32 v%d, 16, v%d' % (x, t))


def rnd2(k, a, b, t):
    k('v_cvt_pk_bf16_f32 v%d, v%d, v%d' % (t, a, b))
    k('v_lshlrev_b32 v%d, 16, v%d' % (a, t))
    k('v_and_b32 v%d, 0xffff0000, v%d' % (b, t))


def unpack(k, lo, hi, src):
    k('v_lshlrev_b32 v%d, 16, v%d' % (lo, src))
    k('v_and_b32 v%d, 0xffff0000, v%d' % (hi, src))


def ln_scalars(k, mean, var, mb, rs, t):
    k('v_mov_b32 v%d, v%d' % (mb, mean))
    rnd1(k, mb, t)
    k('v_max_f32 v%d, 0, v%d' % (rs, var))
    rnd1(k, rs, t)
    k('v_add_f32 v%d, %s, v%d' % (rs, f32bits(EPS), rs))
    rnd1(k, rs, t)
    k('v_sqrt_f32 v%d, v%d' % (rs, rs))
    rnd1(k, rs, t)
    k('v_rcp_f32 v%d, v%d' % (rs, rs))


def mean_var(k, s1, s2, mean, var):
    k('v_mul_f32 v%d, %s, v%d' % (mean, f32bits(1.0 / D), s1))
    k('v_mul_f32 v%d, %s, v%d' % (var, f32bits(1.0 / D), s2))
    k('v_fma_f32 v%d, -v%d, v%d, v%d' % (var, mean, mean, var))


def xor16_32_sum(k, x, t, do16=True, do32=True):
    if do16:
        k('v_mov_b32 v%d, v%d' % (t, x))
        k('v_permlane16_swap_b32 v%d, v%d' % (x, t))
        k('v_add_f32 v%d, v%d, v%d' % (x, x, t))
    if do32:
        k('v_mov_b32 v%d, v%d' % (t, x))
        k('v_permlane32_swap_b32 v%d, v%d' % (x, t))
        k('v_add_f32 v%d, v%d, v%d' % (x, x, t))


import os
PROF = int(os.environ.get('PROF', '0'))
WS_PROF = 128 << 20
PS = 80
NSTAMP = 10


def stamp(k, i, real=False):
    if not PROF:
        return
    r = getattr(k, 'sregs', [PS + 2 * j for j in range(NSTAMP)])[i]
    k('%s s[%d:%d]' % ('s_memrealtime' if real else 's_memtime', r, r + 1))


def stamp_flush(k, kidx, n, nwaves, vt=2):
    if not PROF:
        return
    sregs = getattr(k, 'sregs', [PS + 2 * j for j in range(NSTAMP)])
    k('s_waitcnt vmcnt(0) lgkmcnt(0)')
    srd(k, 44, P_WS, WS_PROF + kidx * (1 << 20), 1 << 20)
    k('v_lshrrev_b32 v%d, 6, v0' % vt)
    k('s_mul_i32 s7, s2, %d' % nwaves)
    k('v_add_u32 v%d, s7, v%d' % (vt, vt))
    k('v_lshlrev_b32 v%d, 7, v%d' % (vt, vt))
    k('s_mov_b64 exec, 1')
    for i in range(n):
        k('v_mov_b32 v%d, s%d' % (vt + 2, sregs[i]))
        k('v_mov_b32 v%d, s%d' % (vt + 3, sregs[i] + 1))
        k('buffer_store_dwordx2 v[%d:%d], v%d, s[44:47], 0 offen offset:%d' % (vt + 2, vt + 3, vt, 8 * i))
    k('s_mov_b64 exec, -1')
```

```python
from asmlib import *
import os

S, D, F = 2048, 576, 4608
ACT = S * D * 2

WS_Y2P = 0
WS_QST = WS_Y2P + ACT
WS_H = WS_QST + 16384
WS_HST = WS_H + ACT
WS_H1 = WS_HST + 16384
WS_X1F = WS_H1 + ACT
WS_X1ST = WS_X1F + ACT
WS_W1S = WS_X1ST + 65536
WS_W2S = WS_W1S + 663552
WS_S1 = WS_W2S + 663552
WS_S3 = WS_S1 + 4096
WS_W3S = WS_S3 + 20480
WS_W4S = WS_W3S + 5308416
WS_PART = WS_W4S + 5308416
WS_FLAG = WS_PART + 8 * ACT
WS_END = WS_FLAG + 65536

P_Q, P_K, P_V, P_SH, P_SK, P_SD, P_BX, P_W1, P_W2, P_W3, P_W4, P_OUT, P_DBG, P_WS = [16 + 2 * i for i in range(14)]

POISON = int(os.environ.get('POISON', '0'))
EPS = 1e-5
LOG2E = 1.4426950408889634
GC1 = -2.0 * 0.7978845608028654 * LOG2E
GC2 = GC1 * 0.044715


def load_kernargs(k):
    k('s_load_dwordx16 s[16:31], s[0:1], 0')
    k('s_load_dwordx8 s[32:39], s[0:1], 64')
    k('s_load_dwordx4 s[40:43], s[0:1], 96')


def srd(k, d, ptr, off, size):
    if off == 0:
        k('s_mov_b32 s%d, s%d' % (d, ptr))
        k('s_mov_b32 s%d, s%d' % (d + 1, ptr + 1))
    else:
        k('s_add_u32 s%d, s%d, %s' % (d, ptr, off))
        k('s_addc_u32 s%d, s%d, 0' % (d + 1, ptr + 1))
    k('s_mov_b32 s%d, %d' % (d + 2, size))
    k('s_mov_b32 s%d, 0x20000' % (d + 3))


def rnd1(k, x, t):
    k('v_cvt_pk_bf16_f32 v%d, v%d, v%d' % (t, x, x))
    k('v_lshlrev_b32 v%d, 16, v%d' % (x, t))


def rnd2(k, a, b, t):
    k('v_cvt_pk_bf16_f32 v%d, v%d, v%d' % (t, a, b))
    k('v_lshlrev_b32 v%d, 16, v%d' % (a, t))
    k('v_and_b32 v%d, 0xffff0000, v%d' % (b, t))


def unpack(k, lo, hi, src):
    k('v_lshlrev_b32 v%d, 16, v%d' % (lo, src))
    k('v_and_b32 v%d, 0xffff0000, v%d' % (hi, src))


def ln_scalars(k, mean, var, mb, rs, t):
    k('v_mov_b32 v%d, v%d' % (mb, mean))
    rnd1(k, mb, t)
    k('v_max_f32 v%d, 0, v%d' % (rs, var))
    rnd1(k, rs, t)
    k('v_add_f32 v%d, %s, v%d' % (rs, f32bits(EPS), rs))
    rnd1(k, rs, t)
    k('v_sqrt_f32 v%d, v%d' % (rs, rs))
    rnd1(k, rs, t)
    k('v_rcp_f32 v%d, v%d' % (rs, rs))


def mean_var(k, s1, s2, mean, var):
    k('v_mul_f32 v%d, %s, v%d' % (mean, f32bits(1.0 / D), s1))
    k('v_mul_f32 v%d, %s, v%d' % (var, f32bits(1.0 / D), s2))
    k('v_fma_f32 v%d, -v%d, v%d, v%d' % (var, mean, mean, var))


def xor16_32_sum(k, x, t, do16=True, do32=True):
    if do16:
        k('v_mov_b32 v%d, v%d' % (t, x))
        k('v_permlane16_swap_b32 v%d, v%d' % (x, t))
        k('v_add_f32 v%d, v%d, v%d' % (x, x, t))
    if do32:
        k('v_mov_b32 v%d, v%d' % (t, x))
        k('v_permlane32_swap_b32 v%d, v%d' % (x, t))
        k('v_add_f32 v%d, v%d, v%d' % (x, x, t))


import os
PROF = int(os.environ.get('PROF', '0'))
WS_PROF = 128 << 20
PS = 80
NSTAMP = 10


GPROF = int(os.environ.get('GPROF', '0'))


def stamp(k, i, real=False, fine=False):
    if not PROF:
        return
    if GPROF and k.name == 'kg_kernel' and 3 <= i <= 8 and not fine:
        return
    if fine and not GPROF:
        return
    r = getattr(k, 'sregs', [PS + 2 * j for j in range(NSTAMP)])[i]
    k('%s s[%d:%d]' % ('s_memrealtime' if real else 's_memtime', r, r + 1))


def stamp_flush(k, kidx, n, nwaves, vt=2):
    if not PROF:
        return
    sregs = getattr(k, 'sregs', [PS + 2 * j for j in range(NSTAMP)])
    k('s_waitcnt vmcnt(0) lgkmcnt(0)')
    srd(k, 44, P_WS, WS_PROF + kidx * (1 << 20), 1 << 20)
    k('v_lshrrev_b32 v%d, 6, v0' % vt)
    k('s_mul_i32 s7, s2, %d' % nwaves)
    k('v_add_u32 v%d, s7, v%d' % (vt, vt))
    k('v_lshlrev_b32 v%d, 7, v%d' % (vt, vt))
    k('s_mov_b64 exec, 1')
    for i in range(n):
        k('v_mov_b32 v%d, s%d' % (vt + 2, sregs[i]))
        k('v_mov_b32 v%d, s%d' % (vt + 3, sregs[i] + 1))
        k('buffer_store_dwordx2 v[%d:%d], v%d, s[44:47], 0 offen offset:%d' % (vt + 2, vt + 3, vt, 8 * i))
    k('s_mov_b64 exec, -1')


def poll_clean(k, issue, regs, acc, cnt):
    lp, lo = k.newlabel('pc'), k.newlabel('pcok')
    k('s_mov_b32 s%d, 0' % cnt)
    k.label(lp)
    issue()
    k('s_waitcnt vmcnt(0)')
    regs = list(regs)
    k('v_max_u32 v%d, v%d, v%d' % (acc, regs[0], regs[1]))
    i = 2
    while i + 1 < len(regs):
        k('v_max3_u32 v%d, v%d, v%d, v%d' % (acc, regs[i], regs[i + 1], acc))
        i += 2
    if i < len(regs):
        k('v_max_u32 v%d, v%d, v%d' % (acc, regs[i], acc))
    k('v_cmp_eq_u32 vcc, -1, v%d' % acc)
    k('s_add_u32 s%d, s%d, 1' % (cnt, cnt))
    k('s_cmp_eq_u64 vcc, 0')
    k('s_cbranch_scc1 %s' % lo)
    k('s_sleep 2')
    k('s_cmp_lt_u32 s%d, 0x8000' % cnt)
    k('s_cbranch_scc1 %s' % lp)
    k.label(lo)
```

```python
from asmlib import *
import os

S, D, F = 2048, 576, 4608
ACT = S * D * 2

WS_Y2P = 0
WS_QST = WS_Y2P + ACT
WS_H = WS_QST + 16384
WS_HST = WS_H + ACT
WS_H1 = WS_HST + 16384
WS_X1F = WS_H1 + ACT
WS_X1ST = WS_X1F + ACT
WS_W1S = WS_X1ST + 65536
WS_W2S = WS_W1S + 663552
WS_S1 = WS_W2S + 663552
WS_S3 = WS_S1 + 4096
WS_W3S = WS_S3 + 20480
WS_W4S = WS_W3S + 5308416
WS_PART = WS_W4S + 5308416
WS_FLAG = WS_PART + 8 * ACT
WS_END = WS_FLAG + 65536

P_Q, P_K, P_V, P_SH, P_SK, P_SD, P_BX, P_W1, P_W2, P_W3, P_W4, P_OUT, P_DBG, P_WS = [16 + 2 * i for i in range(14)]

POISON = int(os.environ.get('POISON', '0'))
EPS = 1e-5
LOG2E = 1.4426950408889634
GC1 = -2.0 * 0.7978845608028654 * LOG2E
GC2 = GC1 * 0.044715


def load_kernargs(k):
    k('s_load_dwordx16 s[16:31], s[0:1], 0')
    k('s_load_dwordx8 s[32:39], s[0:1], 64')
    k('s_load_dwordx4 s[40:43], s[0:1], 96')


def srd(k, d, ptr, off, size):
    if off == 0:
        k('s_mov_b32 s%d, s%d' % (d, ptr))
        k('s_mov_b32 s%d, s%d' % (d + 1, ptr + 1))
    else:
        k('s_add_u32 s%d, s%d, %s' % (d, ptr, off))
        k('s_addc_u32 s%d, s%d, 0' % (d + 1, ptr + 1))
    k('s_mov_b32 s%d, %d' % (d + 2, size))
    k('s_mov_b32 s%d, 0x20000' % (d + 3))


def rnd1(k, x, t):
    k('v_cvt_pk_bf16_f32 v%d, v%d, v%d' % (t, x, x))
    k('v_lshlrev_b32 v%d, 16, v%d' % (x, t))


def rnd2(k, a, b, t):
    k('v_cvt_pk_bf16_f32 v%d, v%d, v%d' % (t, a, b))
    k('v_lshlrev_b32 v%d, 16, v%d' % (a, t))
    k('v_and_b32 v%d, 0xffff0000, v%d' % (b, t))


def unpack(k, lo, hi, src):
    k('v_lshlrev_b32 v%d, 16, v%d' % (lo, src))
    k('v_and_b32 v%d, 0xffff0000, v%d' % (hi, src))


def ln_scalars(k, mean, var, mb, rs, t):
    k('v_mov_b32 v%d, v%d' % (mb, mean))
    rnd1(k, mb, t)
    k('v_max_f32 v%d, 0, v%d' % (rs, var))
    rnd1(k, rs, t)
    k('v_add_f32 v%d, %s, v%d' % (rs, f32bits(EPS), rs))
    rnd1(k, rs, t)
    k('v_sqrt_f32 v%d, v%d' % (rs, rs))
    rnd1(k, rs, t)
    k('v_rcp_f32 v%d, v%d' % (rs, rs))


def mean_var(k, s1, s2, mean, var):
    k('v_mul_f32 v%d, %s, v%d' % (mean, f32bits(1.0 / D), s1))
    k('v_mul_f32 v%d, %s, v%d' % (var, f32bits(1.0 / D), s2))
    k('v_fma_f32 v%d, -v%d, v%d, v%d' % (var, mean, mean, var))


def xor16_32_sum(k, x, t, do16=True, do32=True):
    if do16:
        k('v_mov_b32 v%d, v%d' % (t, x))
        k('v_permlane16_swap_b32 v%d, v%d' % (x, t))
        k('v_add_f32 v%d, v%d, v%d' % (x, x, t))
    if do32:
        k('v_mov_b32 v%d, v%d' % (t, x))
        k('v_permlane32_swap_b32 v%d, v%d' % (x, t))
        k('v_add_f32 v%d, v%d, v%d' % (x, x, t))


import os
PROF = int(os.environ.get('PROF', '0'))
WS_PROF = 128 << 20
PS = 80
NSTAMP = 10


GPROF = int(os.environ.get('GPROF', '0'))


def stamp(k, i, real=False, fine=False):
    if not PROF:
        return
    if GPROF and k.name == 'kg_kernel' and 3 <= i <= 8 and not fine:
        return
    if fine and not GPROF:
        return
    r = getattr(k, 'sregs', [PS + 2 * j for j in range(NSTAMP)])[i]
    k('%s s[%d:%d]' % ('s_memrealtime' if real else 's_memtime', r, r + 1))


def stamp_flush(k, kidx, n, nwaves, vt=2):
    if not PROF:
        return
    sregs = getattr(k, 'sregs', [PS + 2 * j for j in range(NSTAMP)])
    k('s_waitcnt vmcnt(0) lgkmcnt(0)')
    srd(k, 44, P_WS, WS_PROF + kidx * (1 << 20), 1 << 20)
    k('v_lshrrev_b32 v%d, 6, v0' % vt)
    k('s_mul_i32 s7, s2, %d' % nwaves)
    k('v_add_u32 v%d, s7, v%d' % (vt, vt))
    k('v_lshlrev_b32 v%d, 7, v%d' % (vt, vt))
    k('s_mov_b64 exec, 1')
    for i in range(n):
        k('v_mov_b32 v%d, s%d' % (vt + 2, sregs[i]))
        k('v_mov_b32 v%d, s%d' % (vt + 3, sregs[i] + 1))
        k('buffer_store_dwordx2 v[%d:%d], v%d, s[44:47], 0 offen offset:%d' % (vt + 2, vt + 3, vt, 8 * i))
    k('s_mov_b64 exec, -1')


def poll_clean(k, issue, regs, acc, cnt):
    lp, lo = k.newlabel('pc'), k.newlabel('pcok')
    k('s_mov_b32 s%d, 0' % cnt)
    k.label(lp)
    issue()
    k('s_waitcnt vmcnt(0)')
    regs = list(regs)
    k('v_max_u32 v%d, v%d, v%d' % (acc, regs[0], regs[1]))
    i = 2
    while i + 1 < len(regs):
        k('v_max3_u32 v%d, v%d, v%d, v%d' % (acc, regs[i], regs[i + 1], acc))
        i += 2
    if i < len(regs):
        k('v_max_u32 v%d, v%d, v%d' % (acc, regs[i], acc))
    k('v_cmp_eq_u32 vcc, -1, v%d' % acc)
    k('s_add_u32 s%d, s%d, 1' % (cnt, cnt))
    k('s_cmp_eq_u64 vcc, 0')
    k('s_cbranch_scc1 %s' % lo)
    k('s_sleep 2')
    k('s_cmp_lt_u32 s%d, 0x8000' % cnt)
    k('s_cbranch_scc1 %s' % lp)
    k.label(lo)


CPF = int(os.environ.get('CPF', '1'))


def code_prefetch(k, target, nbytes, vlane, vtmp, vdst, s0):
    if not CPF:
        return
    lab = k.newlabel('pc')
    k('s_getpc_b64 s[%d:%d]' % (s0, s0 + 1))
    k.label(lab)
    k('s_add_u32 s%d, s%d, %s-%s' % (s0, s0, target, lab))
    k('s_addc_u32 s%d, s%d, 0' % (s0 + 1, s0 + 1))
    k('v_lshlrev_b32 v%d, 7, v%d' % (vtmp, vlane))
    n = (nbytes + 8191) // 8192
    for i in range(n):
        k('global_load_dword v%d, v%d, s[%d:%d]' % (vdst, vtmp, s0, s0 + 1))
        if i < n - 1:
            k('v_add_u32 v%d, 8192, v%d' % (vtmp, vtmp))
```

```python
from asmlib import *
import os

S, D, F = 2048, 576, 4608
ACT = S * D * 2

WS_Y2P = 0
WS_QST = WS_Y2P + ACT
WS_H = WS_QST + 16384
WS_HST = WS_H + ACT
WS_H1 = WS_HST + 16384
WS_X1F = WS_H1 + ACT
WS_X1ST = WS_X1F + ACT
WS_W1S = WS_X1ST + 65536
WS_W2S = WS_W1S + 663552
WS_S1 = WS_W2S + 663552
WS_S3 = WS_S1 + 4096
WS_W3S = WS_S3 + 20480
WS_W4S = WS_W3S + 5308416
WS_PART = WS_W4S + 5308416
WS_FLAG = WS_PART + 8 * ACT
WS_END = WS_FLAG + 65536

P_Q, P_K, P_V, P_SH, P_SK, P_SD, P_BX, P_W1, P_W2, P_W3, P_W4, P_OUT, P_DBG, P_WS = [16 + 2 * i for i in range(14)]

POISON = int(os.environ.get('POISON', '0'))
EPS = 1e-5
LOG2E = 1.4426950408889634
GC1 = -2.0 * 0.7978845608028654 * LOG2E
GC2 = GC1 * 0.044715


def load_kernargs(k):
    k('s_load_dwordx16 s[16:31], s[0:1], 0')
    k('s_load_dwordx8 s[32:39], s[0:1], 64')
    k('s_load_dwordx4 s[40:43], s[0:1], 96')


def srd(k, d, ptr, off, size):
    if off == 0:
        k('s_mov_b32 s%d, s%d' % (d, ptr))
        k('s_mov_b32 s%d, s%d' % (d + 1, ptr + 1))
    else:
        k('s_add_u32 s%d, s%d, %s' % (d, ptr, off))
        k('s_addc_u32 s%d, s%d, 0' % (d + 1, ptr + 1))
    k('s_mov_b32 s%d, %d' % (d + 2, size))
    k('s_mov_b32 s%d, 0x20000' % (d + 3))


def rnd1(k, x, t):
    k('v_cvt_pk_bf16_f32 v%d, v%d, v%d' % (t, x, x))
    k('v_lshlrev_b32 v%d, 16, v%d' % (x, t))


def rnd2(k, a, b, t):
    k('v_cvt_pk_bf16_f32 v%d, v%d, v%d' % (t, a, b))
    k('v_lshlrev_b32 v%d, 16, v%d' % (a, t))
    k('v_and_b32 v%d, 0xffff0000, v%d' % (b, t))


def unpack(k, lo, hi, src):
    k('v_lshlrev_b32 v%d, 16, v%d' % (lo, src))
    k('v_and_b32 v%d, 0xffff0000, v%d' % (hi, src))


def ln_scalars(k, mean, var, mb, rs, t):
    k('v_mov_b32 v%d, v%d' % (mb, mean))
    rnd1(k, mb, t)
    k('v_max_f32 v%d, 0, v%d' % (rs, var))
    rnd1(k, rs, t)
    k('v_add_f32 v%d, %s, v%d' % (rs, f32bits(EPS), rs))
    rnd1(k, rs, t)
    k('v_sqrt_f32 v%d, v%d' % (rs, rs))
    rnd1(k, rs, t)
    k('v_rcp_f32 v%d, v%d' % (rs, rs))


def mean_var(k, s1, s2, mean, var):
    k('v_mul_f32 v%d, %s, v%d' % (mean, f32bits(1.0 / D), s1))
    k('v_mul_f32 v%d, %s, v%d' % (var, f32bits(1.0 / D), s2))
    k('v_fma_f32 v%d, -v%d, v%d, v%d' % (var, mean, mean, var))


def xor16_32_sum(k, x, t, do16=True, do32=True):
    if do16:
        k('v_mov_b32 v%d, v%d' % (t, x))
        k('v_permlane16_swap_b32 v%d, v%d' % (x, t))
        k('v_add_f32 v%d, v%d, v%d' % (x, x, t))
    if do32:
        k('v_mov_b32 v%d, v%d' % (t, x))
        k('v_permlane32_swap_b32 v%d, v%d' % (x, t))
        k('v_add_f32 v%d, v%d, v%d' % (x, x, t))


import os
PROF = int(os.environ.get('PROF', '0'))
WS_PROF = 128 << 20
PS = 80
NSTAMP = 10


GPROF = int(os.environ.get('GPROF', '0'))


def stamp(k, i, real=False, fine=False):
    if not PROF:
        return
    if GPROF and k.name == 'kg_kernel' and 3 <= i <= 8 and not fine:
        return
    if fine and not GPROF:
        return
    r = getattr(k, 'sregs', [PS + 2 * j for j in range(NSTAMP)])[i]
    k('%s s[%d:%d]' % ('s_memrealtime' if real else 's_memtime', r, r + 1))


def stamp_flush(k, kidx, n, nwaves, vt=2):
    if not PROF:
        return
    sregs = getattr(k, 'sregs', [PS + 2 * j for j in range(NSTAMP)])
    k('s_waitcnt vmcnt(0) lgkmcnt(0)')
    srd(k, 44, P_WS, WS_PROF + kidx * (1 << 20), 1 << 20)
    k('v_lshrrev_b32 v%d, 6, v0' % vt)
    k('s_mul_i32 s7, s2, %d' % nwaves)
    k('v_add_u32 v%d, s7, v%d' % (vt, vt))
    k('v_lshlrev_b32 v%d, 7, v%d' % (vt, vt))
    k('s_mov_b64 exec, 1')
    for i in range(n):
        k('v_mov_b32 v%d, s%d' % (vt + 2, sregs[i]))
        k('v_mov_b32 v%d, s%d' % (vt + 3, sregs[i] + 1))
        k('buffer_store_dwordx2 v[%d:%d], v%d, s[44:47], 0 offen offset:%d' % (vt + 2, vt + 3, vt, 8 * i))
    k('s_mov_b64 exec, -1')


def poll_clean(k, issue, regs, acc, cnt):
    lp, lo = k.newlabel('pc'), k.newlabel('pcok')
    k('s_mov_b32 s%d, 0' % cnt)
    k.label(lp)
    issue()
    k('s_waitcnt vmcnt(0)')
    regs = list(regs)
    k('v_max_u32 v%d, v%d, v%d' % (acc, regs[0], regs[1]))
    i = 2
    while i + 1 < len(regs):
        k('v_max3_u32 v%d, v%d, v%d, v%d' % (acc, regs[i], regs[i + 1], acc))
        i += 2
    if i < len(regs):
        k('v_max_u32 v%d, v%d, v%d' % (acc, regs[i], acc))
    k('v_cmp_eq_u32 vcc, -1, v%d' % acc)
    k('s_add_u32 s%d, s%d, 1' % (cnt, cnt))
    k('s_cmp_eq_u64 vcc, 0')
    k('s_cbranch_scc1 %s' % lo)
    k('s_sleep 2')
    k('s_cmp_lt_u32 s%d, 0x8000' % cnt)
    k('s_cbranch_scc1 %s' % lp)
    k.label(lo)


CPF = int(os.environ.get('CPF', '1'))


def code_prefetch(k, target, nbytes, vlane, vtmp, vdst, s0):
    if not CPF:
        return
    lab = k.newlabel('pc')
    k('s_getpc_b64 s[%d:%d]' % (s0, s0 + 1))
    k.label(lab)
    k('s_add_u32 s%d, s%d, %s-%s' % (s0, s0, target, lab))
    k('s_addc_u32 s%d, s%d, 0' % (s0 + 1, s0 + 1))
    k('v_lshlrev_b32 v%d, 7, v%d' % (vtmp, vlane))
    n = (nbytes + 8191) // 8192
    for i in range(n):
        k('global_load_dword v%d, v%d, s[%d:%d]' % (vdst, vtmp, s0, s0 + 1))
        if i < n - 1:
            k('v_add_u32 v%d, 8192, v%d' % (vtmp, vtmp))


SPF = int(os.environ.get('SPF', '1'))


def self_prefetch(k, nbytes, vdst=None):
    if not SPF:
        return
    lab, skip = k.newlabel('sp'), k.newlabel('spskip')
    k('s_getpc_b64 s[44:45]')
    k.label(lab)
    k('s_sub_u32 s44, s44, %s-%s' % (lab, k.name))
    k('s_subb_u32 s45, s45, 0')
    k('v_lshlrev_b32 v1, 7, v0')
    k('v_cmp_gt_u32 vcc, %s, v1' % nbytes)
    k('s_and_saveexec_b64 s[46:47], vcc')
    k('s_cbranch_execz %s' % skip)
    k('global_load_dword v%d, v1, s[44:45]' % vdst)
    k.label(skip)
    k('s_mov_b64 exec, -1')
```

```python
from asmlib import *
import os

S, D, F = 2048, 576, 4608
ACT = S * D * 2

WS_Y2P = 0
WS_QST = WS_Y2P + ACT
WS_H = WS_QST + 16384
WS_HST = WS_H + ACT
WS_H1 = WS_HST + 16384
WS_X1F = WS_H1 + ACT
WS_X1ST = WS_X1F + ACT
WS_W1S = WS_X1ST + 65536
WS_W2S = WS_W1S + 663552
WS_S1 = WS_W2S + 663552
WS_S3 = WS_S1 + 4096
WS_W3S = WS_S3 + 20480
WS_W4S = WS_W3S + 5308416
WS_PART = WS_W4S + 5308416
WS_FLAG = WS_PART + 8 * ACT
WS_END = WS_FLAG + 65536

P_Q, P_K, P_V, P_SH, P_SK, P_SD, P_BX, P_W1, P_W2, P_W3, P_W4, P_OUT, P_DBG, P_WS = [16 + 2 * i for i in range(14)]

POISON = int(os.environ.get('POISON', '0'))
EPS = 1e-5
LOG2E = 1.4426950408889634
GC1 = -2.0 * 0.7978845608028654 * LOG2E
GC2 = GC1 * 0.044715


def load_kernargs(k):
    k('s_load_dwordx16 s[16:31], s[0:1], 0')
    k('s_load_dwordx8 s[32:39], s[0:1], 64')
    k('s_load_dwordx4 s[40:43], s[0:1], 96')


def srd(k, d, ptr, off, size):
    if off == 0:
        k('s_mov_b32 s%d, s%d' % (d, ptr))
        k('s_mov_b32 s%d, s%d' % (d + 1, ptr + 1))
    else:
        k('s_add_u32 s%d, s%d, %s' % (d, ptr, off))
        k('s_addc_u32 s%d, s%d, 0' % (d + 1, ptr + 1))
    k('s_mov_b32 s%d, %d' % (d + 2, size))
    k('s_mov_b32 s%d, 0x20000' % (d + 3))


def rnd1(k, x, t):
    k('v_cvt_pk_bf16_f32 v%d, v%d, v%d' % (t, x, x))
    k('v_lshlrev_b32 v%d, 16, v%d' % (x, t))


def rnd2(k, a, b, t):
    k('v_cvt_pk_bf16_f32 v%d, v%d, v%d' % (t, a, b))
    k('v_lshlrev_b32 v%d, 16, v%d' % (a, t))
    k('v_and_b32 v%d, 0xffff0000, v%d' % (b, t))


def unpack(k, lo, hi, src):
    k('v_lshlrev_b32 v%d, 16, v%d' % (lo, src))
    k('v_and_b32 v%d, 0xffff0000, v%d' % (hi, src))


def ln_scalars(k, mean, var, mb, rs, t):
    k('v_mov_b32 v%d, v%d' % (mb, mean))
    rnd1(k, mb, t)
    k('v_max_f32 v%d, 0, v%d' % (rs, var))
    rnd1(k, rs, t)
    k('v_add_f32 v%d, %s, v%d' % (rs, f32bits(EPS), rs))
    rnd1(k, rs, t)
    k('v_sqrt_f32 v%d, v%d' % (rs, rs))
    rnd1(k, rs, t)
    k('v_rcp_f32 v%d, v%d' % (rs, rs))


def mean_var(k, s1, s2, mean, var):
    k('v_mul_f32 v%d, %s, v%d' % (mean, f32bits(1.0 / D), s1))
    k('v_mul_f32 v%d, %s, v%d' % (var, f32bits(1.0 / D), s2))
    k('v_fma_f32 v%d, -v%d, v%d, v%d' % (var, mean, mean, var))


def xor16_32_sum(k, x, t, do16=True, do32=True):
    if do16:
        k('v_mov_b32 v%d, v%d' % (t, x))
        k('v_permlane16_swap_b32 v%d, v%d' % (x, t))
        k('v_add_f32 v%d, v%d, v%d' % (x, x, t))
    if do32:
        k('v_mov_b32 v%d, v%d' % (t, x))
        k('v_permlane32_swap_b32 v%d, v%d' % (x, t))
        k('v_add_f32 v%d, v%d, v%d' % (x, x, t))


import os
PROF = int(os.environ.get('PROF', '0'))
WS_PROF = 128 << 20
PS = 80
NSTAMP = 10


GPROF = int(os.environ.get('GPROF', '0'))


def stamp(k, i, real=False, fine=False):
    if not PROF:
        return
    if GPROF and k.name == 'kg_kernel' and 3 <= i <= 8 and not fine:
        return
    if fine and not GPROF:
        return
    r = getattr(k, 'sregs', [PS + 2 * j for j in range(NSTAMP)])[i]
    k('%s s[%d:%d]' % ('s_memrealtime' if real else 's_memtime', r, r + 1))


def stamp_flush(k, kidx, n, nwaves, vt=2):
    if not PROF:
        return
    sregs = getattr(k, 'sregs', [PS + 2 * j for j in range(NSTAMP)])
    k('s_waitcnt vmcnt(0) lgkmcnt(0)')
    srd(k, 44, P_WS, WS_PROF + kidx * (1 << 20), 1 << 20)
    k('v_lshrrev_b32 v%d, 6, v0' % vt)
    k('s_mul_i32 s7, s2, %d' % nwaves)
    k('v_add_u32 v%d, s7, v%d' % (vt, vt))
    k('v_lshlrev_b32 v%d, 7, v%d' % (vt, vt))
    k('s_mov_b64 exec, 1')
    for i in range(n):
        k('v_mov_b32 v%d, s%d' % (vt + 2, sregs[i]))
        k('v_mov_b32 v%d, s%d' % (vt + 3, sregs[i] + 1))
        k('buffer_store_dwordx2 v[%d:%d], v%d, s[44:47], 0 offen offset:%d' % (vt + 2, vt + 3, vt, 8 * i))
    k('s_mov_b64 exec, -1')


def poll_clean(k, issue, regs, acc, cnt):
    lp, lo = k.newlabel('pc'), k.newlabel('pcok')
    k('s_mov_b32 s%d, 0' % cnt)
    k.label(lp)
    issue()
    k('s_waitcnt vmcnt(0)')
    regs = list(regs)
    k('v_max_u32 v%d, v%d, v%d' % (acc, regs[0], regs[1]))
    i = 2
    while i + 1 < len(regs):
        k('v_max3_u32 v%d, v%d, v%d, v%d' % (acc, regs[i], regs[i + 1], acc))
        i += 2
    if i < len(regs):
        k('v_max_u32 v%d, v%d, v%d' % (acc, regs[i], acc))
    k('v_cmp_eq_u32 vcc, -1, v%d' % acc)
    k('s_add_u32 s%d, s%d, 1' % (cnt, cnt))
    k('s_cmp_eq_u64 vcc, 0')
    k('s_cbranch_scc1 %s' % lo)
    k('s_sleep 2')
    k('s_cmp_lt_u32 s%d, 0x8000' % cnt)
    k('s_cbranch_scc1 %s' % lp)
    k.label(lo)


CPF = int(os.environ.get('CPF', '1'))


def code_prefetch(k, target, nbytes, vlane, vtmp, vdst, s0, endlabel=None, issue=None):
    if not CPF:
        return
    issue = issue or k
    lab = k.newlabel('pc')
    k('s_getpc_b64 s[%d:%d]' % (s0, s0 + 1))
    k.label(lab)
    k('s_add_u32 s%d, s%d, %s-%s' % (s0, s0, target, lab))
    k('s_addc_u32 s%d, s%d, 0' % (s0 + 1, s0 + 1))
    k('v_lshlrev_b32 v%d, 7, v%d' % (vtmp, vlane))
    n = (nbytes + 8191) // 8192
    for i in range(n):
        issue('global_load_dword v%d, v%d, s[%d:%d]' % (vdst, vtmp, s0, s0 + 1))
        if i < n - 1:
            k('v_add_u32 v%d, 8192, v%d' % (vtmp, vtmp))
    if endlabel:
        k('v_lshlrev_b32 v%d, 7, v%d' % (vtmp, vlane))
        k('v_add_u32 v%d, %s-%s-8192, v%d' % (vtmp, endlabel, target, vtmp))
        issue('global_load_dword v%d, v%d, s[%d:%d]' % (vdst, vtmp, s0, s0 + 1))


SPF = int(os.environ.get('SPF', '1'))


def self_prefetch(k, nbytes, vdst=None):
    if not SPF:
        return
    lab, skip = k.newlabel('sp'), k.newlabel('spskip')
    k('s_getpc_b64 s[44:45]')
    k.label(lab)
    k('s_sub_u32 s44, s44, %s-%s' % (lab, k.name))
    k('s_subb_u32 s45, s45, 0')
    k('v_lshlrev_b32 v1, 7, v0')
    k('v_cmp_gt_u32 vcc, %s, v1' % nbytes)
    k('s_and_saveexec_b64 s[46:47], vcc')
    k('s_cbranch_execz %s' % skip)
    k('global_load_dword v%d, v1, s[44:45]' % vdst)
    k.label(skip)
    k('s_mov_b64 exec, -1')
```
